```python
import torch

def _softmax(x, axis=-1):
    return torch.softmax(x, dim=axis)
def _gelu(x):
    return torch.nn.functional.gelu(x, approximate="tanh")
def _silu(x):
    return torch.nn.functional.silu(x)
def _sigmoid(x):
    return torch.sigmoid(x)
def _layernorm(x, axis=-1, eps=1e-5):
    m = x.mean(dim=axis, keepdim=True)
    v = x.var(dim=axis, keepdim=True, unbiased=False)
    return (x - m) / torch.sqrt(v + eps)
def _scatter_add(tgt, idx, src, axis=0):
    return tgt.clone().index_add_(axis, idx, src)
def _segment_sum(src, seg, n):
    out = torch.zeros((n,) + src.shape[1:], dtype=src.dtype)
    return out.index_add_(0, seg, src)
def _pad(x, pw):
    flat = tuple(v for pair in reversed(pw) for v in pair)
    return torch.nn.functional.pad(x, flat)

kernel_name = 'recurrent_scan__mha_block_cached__glu_gated_swiglu__decode'

def setup_inputs():

    _w = (lambda a: (lambda t: t.to(torch.bfloat16) if t.is_floating_point() else t)(torch.as_tensor(a)))
    def _A_setup():
        B, Sq, D = 1, 1, 640
        H, Sk, Dh = 32, 32768, 192
        return {
            "x": _w((lambda *s: torch.randn(*s, dtype=torch.bfloat16) * 0.2)(B, Sq, D)),
            "k_cache": _w((lambda *s: torch.randn(*s, dtype=torch.bfloat16) * 1.6)(B, H, Sk, Dh)),
            "v_cache": _w((lambda *s: torch.randn(*s, dtype=torch.bfloat16) * 1.6)(B, H, Sk, Dh)),
            "wq": _w((lambda *s: torch.randn(*s, dtype=torch.bfloat16) * 1.6)(D, H * Dh) * (D ** -0.5)),
            "wo": _w((lambda *s: torch.randn(*s, dtype=torch.bfloat16) * 1.6)(H * Dh, D) * ((H * Dh) ** -0.5)),
        }
    _A_in = _A_setup()

    def _B_setup():
        B, S, D, F = 1, 1, 640, 1536
        return {
            "x": _w((lambda *s: torch.randn(*s, dtype=torch.bfloat16) * 0.2)(B, S, D)),
            "w1": _w((lambda *s: torch.randn(*s, dtype=torch.bfloat16) * 0.8)(D, F) * (2.0 / D) ** 0.5),
            "w3": _w((lambda *s: torch.randn(*s, dtype=torch.bfloat16) * 0.8)(D, F) * (2.0 / D) ** 0.5),
            "w2": _w((lambda *s: torch.randn(*s, dtype=torch.bfloat16) * 0.8)(F, D) * (2.0 / F) ** 0.5),
        }
    _B_in = _B_setup()

    return {
        "A_x": _A_in["x"],
        "A_k_cache": _A_in["k_cache"],
        "A_v_cache": _A_in["v_cache"],
        "A_wq": _A_in["wq"],
        "A_wo": _A_in["wo"],
        "B_x": _B_in["x"],
        "B_w1": _B_in["w1"],
        "B_w3": _B_in["w3"],
        "B_w2": _B_in["w2"],
    }

def reference(A_x, A_k_cache, A_v_cache, A_wq, A_wo, B_x, B_w1, B_w3, B_w2):
    def _A_ref(x, k_cache, v_cache, wq, wo):
        B, Sq, D = x.shape
        H, Dh = 32, 192
        q = (lambda x, *d: x.permute(*d))((x @ wq).reshape(B, Sq, H, Dh), 0, 2, 1, 3)
        scores = torch.einsum("bhqd,bhkd->bhqk", q, k_cache) * (Dh ** -0.5)
        p = _softmax(scores, axis=-1)
        o = torch.einsum("bhqk,bhkd->bhqd", p, v_cache)
        return (lambda x, *d: x.permute(*d))(o, 0, 2, 1, 3).reshape(B, Sq, H * Dh) @ wo

    def _B_ref(x, w1, w3, w2):
        gate = torch.einsum("bsd,df->bsf", x, w1)
        up = torch.einsum("bsd,df->bsf", x, w3)
        h = _silu(gate) * up
        out = torch.einsum("bsf,fd->bsd", h, w2)
        return out

    x = A_x
    xn = _layernorm(x, axis=-1)
    s = _A_ref(xn, A_k_cache, A_v_cache, A_wq, A_wo)
    g = _silu(_B_ref(xn, B_w1, B_w3, B_w2))
    return x + s * g
```

```python
import sys

NAME = "recurrent_scan__mha_block_cached__glu_gated_swiglu__decode"

U = 4
NCHUNK = 32
NT = " nt"
for a in sys.argv[1:]:
    k, v = a.split("=")
    if k == "U":
        U = int(v)
    elif k == "NCHUNK":
        NCHUNK = int(v)
    elif k == "NT":
        NT = {0:"",1:" nt",2:" sc1",3:" sc0 sc1",4:" sc1 nt",5:" sc0 nt", 6:" sc0 sc1 nt"}[int(v)]

H, SK, DH, D, F = 32, 32768, 192, 640, 1536
KEYS_WG = SK // NCHUNK
KEYS_WAVE = KEYS_WG // 4
ITERS = KEYS_WAVE // (8 * U)
assert ITERS * 8 * U * 4 * NCHUNK == SK

QP_OFF = 0
GP_OFF = QP_OFF + 8 * 6144 * 4
UP_OFF = GP_OFF + 8 * 1536 * 4
ML_OFF = UP_OFF + 8 * 1536 * 4
AP_OFF = ML_OFF + 65536
SP_OFF = AP_OFF + 4 * 1024 * 1024
WS_USED = SP_OFF + 160 * 640 * 4

LOG2E = "0x3fb8aa3b"
SCALE = "0x3d93cd3a"
EPS = "0x3727c5ac"
INV640 = "0x3acccccd"

out = []


def e(s):
    out.append("    " + s)


def lab(s):
    out.append(s + ":")


def bf16r(v, t):
    e(f"v_cvt_pk_bf16_f32 v{t}, v{v}, v{v}")
    e(f"v_lshlrev_b32 v{v}, 16, v{t}")


def srd(dst, lo, hi, nbytes):
    e(f"s_mov_b32 s{dst}, s{lo}")
    e(f"s_mov_b32 s{dst+1}, s{hi}")
    e(f"s_mov_b32 s{dst+2}, {nbytes}")
    e(f"s_mov_b32 s{dst+3}, 0x00020000")


def wave_allreduce(op, v, t, vl4):
    for m in (1, 2, 4, 8, 16, 32):
        e(f"v_xor_b32 v{t}, {m*4}, v{vl4}")
        e(f"ds_bpermute_b32 v{t}, v{t}, v{v}")
        e("s_waitcnt lgkmcnt(0)")
        e(f"{op} v{v}, v{v}, v{t}")


def kernel_begin(name):
    out.append(f".globl {name}")
    out.append(".p2align 8")
    out.append(f".type {name},@function")
    lab(name)


def descriptor(name, vgpr, sgpr=96):
    v = (vgpr + 7) // 8 * 8
    out.append(f".amdhsa_kernel {name}")
    out.append(f"  .amdhsa_next_free_vgpr {v}")
    out.append(f"  .amdhsa_next_free_sgpr {sgpr}")
    out.append(f"  .amdhsa_accum_offset {v}")
    out.append("  .amdhsa_group_segment_fixed_size 0")
    out.append("  .amdhsa_kernarg_size 96")
    out.append("  .amdhsa_user_sgpr_count 2")
    out.append("  .amdhsa_user_sgpr_kernarg_segment_ptr 1")
    out.append("  .amdhsa_system_sgpr_workgroup_id_x 1")
    out.append(".end_amdhsa_kernel")


def layernorm_to_lds(xs, lds_off):
    srd(40, xs, xs + 1, 1280)
    e("v_and_b32 v1, 63, v0")
    e("v_mul_u32_u24 v2, 20, v1")
    for i in range(5):
        e(f"buffer_load_dword v{3+i}, v2, s[40:43], 0 offen offset:{4*i}")
    e("v_lshlrev_b32 v30, 2, v1")
    e("s_waitcnt vmcnt(0)")
    for i in range(5):
        e(f"v_lshlrev_b32 v{10+2*i}, 16, v{3+i}")
        e(f"v_and_b32 v{11+2*i}, 0xffff0000, v{3+i}")
    e("v_add_f32 v20, v10, v11")
    for i in range(2, 10):
        e(f"v_add_f32 v20, v20, v{10+i}")
    wave_allreduce("v_add_f32", 20, 21, 30)
    e(f"v_mul_f32 v20, {INV640}, v20")
    e("v_sub_f32 v22, v10, v20")
    e("v_mul_f32 v23, v22, v22")
    for i in range(1, 10):
        e(f"v_sub_f32 v22, v{10+i}, v20")
        e("v_fmac_f32 v23, v22, v22")
    wave_allreduce("v_add_f32", 23, 21, 30)
    e(f"v_mul_f32 v23, {INV640}, v23")
    bf16r(20, 21)
    bf16r(23, 21)
    e(f"v_add_f32 v23, {EPS}, v23")
    bf16r(23, 21)
    e("v_sqrt_f32 v23, v23")
    e("s_nop 0")
    bf16r(23, 21)
    e("v_rcp_f32 v24, v23")
    e("s_nop 0")
    for i in range(10):
        e(f"v_sub_f32 v25, v{10+i}, v20")
        bf16r(25, 21)
        e("v_mul_f32 v26, v25, v24")
        e("v_fma_f32 v27, -v26, v23, v25")
        e("v_fma_f32 v26, v27, v24, v26")
        bf16r(26, 21)
        e(f"v_mov_b32 v{10+i}, v26")
    e("v_mul_u32_u24 v28, 40, v1")
    for i in range(10):
        e(f"ds_write_b32 v28, v{10+i} offset:{lds_off + 4*i}")
    e("s_waitcnt lgkmcnt(0)")


def gen_proj1():
    name = "proj1_kernel"
    kernel_begin(name)
    e("s_cmp_ge_u32 s2, 144")
    e("s_cbranch_scc1 L_p1_end")
    e("s_load_dwordx2 s[4:5], s[0:1], 0")
    e("s_load_dwordx2 s[6:7], s[0:1], 24")
    e("s_load_dwordx2 s[8:9], s[0:1], 48")
    e("s_load_dwordx2 s[10:11], s[0:1], 56")
    e("s_load_dwordx2 s[12:13], s[0:1], 88")
    e("s_waitcnt lgkmcnt(0)")
    e("s_cmp_lt_u32 s2, 96")
    e("s_cbranch_scc0 L_p1_b")
    e("s_mov_b32 s14, s6")
    e("s_mov_b32 s15, s7")
    e("s_mov_b32 s16, 12288")
    e(f"s_mov_b32 s17, {640*12288}")
    e("s_mul_i32 s19, s2, 43691")
    e("s_lshr_b32 s19, s19, 19")
    e("s_mul_i32 s18, s19, 12")
    e("s_sub_u32 s18, s2, s18")
    e("s_mul_i32 s20, s19, 24576")
    e(f"s_add_u32 s20, s20, {QP_OFF}")
    e("s_branch L_p1_dec")
    lab("L_p1_b")
    e("s_sub_u32 s21, s2, 96")
    e("s_mov_b32 s14, s8")
    e("s_mov_b32 s15, s9")
    e(f"s_mov_b32 s20, {GP_OFF}")
    e("s_cmp_lt_u32 s21, 24")
    e("s_cbranch_scc1 L_p1_c")
    e("s_sub_u32 s21, s21, 24")
    e("s_mov_b32 s14, s10")
    e("s_mov_b32 s15, s11")
    e(f"s_mov_b32 s20, {UP_OFF}")
    lab("L_p1_c")
    e("s_mov_b32 s16, 3072")
    e(f"s_mov_b32 s17, {640*3072}")
    e("s_mul_i32 s19, s21, 21846")
    e("s_lshr_b32 s19, s19, 16")
    e("s_mul_i32 s18, s19, 3")
    e("s_sub_u32 s18, s21, s18")
    e("s_mul_i32 s22, s19, 6144")
    e("s_add_u32 s20, s20, s22")
    lab("L_p1_dec")
    e("s_lshl_b32 s22, s18, 11")
    e("s_add_u32 s20, s20, s22")
    srd(24, 14, 15, "s17")
    srd(28, 12, 13, WS_USED)
    layernorm_to_lds(4, 0)
    e("s_barrier")
    e("v_lshrrev_b32 v31, 6, v0")
    e("s_nop 0")
    e("v_readfirstlane_b32 s32, v31")
    e("s_mul_i32 s33, s19, 80")
    e("s_mul_i32 s34, s32, 20")
    e("s_add_u32 s33, s33, s34")
    e("s_mul_i32 s35, s33, s16")
    e("s_lshl_b32 s34, s33, 2")
    e("v_mov_b32 v31, s34")
    for i in range(5):
        e(f"ds_read_b128 v[{32+4*i}:{35+4*i}], v31 offset:{16*i}")
    e("v_and_b32 v1, 63, v0")
    e("v_lshlrev_b32 v2, 4, v1")
    e("s_lshl_b32 s34, s18, 10")
    e("v_add_u32 v2, s34, v2")
    for k in range(20):
        e(f"buffer_load_dwordx4 v[{56+4*k}:{59+4*k}], v2, s[24:27], s35 offen")
        if k < 19:
            e("s_add_u32 s35, s35, s16")
    for i in range(8):
        e(f"v_mov_b32 v{140+i}, 0")
    e("s_waitcnt lgkmcnt(0)")
    for k in range(20):
        e(f"s_waitcnt vmcnt({19-k})")
        for i in range(4):
            w = 56 + 4 * k + i
            e(f"v_lshlrev_b32 v3, 16, v{w}")
            e(f"v_and_b32 v4, 0xffff0000, v{w}")
            e(f"v_fmac_f32 v{140+2*i}, v{32+k}, v3")
            e(f"v_fmac_f32 v{141+2*i}, v{32+k}, v4")
    e("v_lshlrev_b32 v3, 5, v0")
    e("ds_write_b128 v3, v[140:143] offset:2560")
    e("ds_write_b128 v3, v[144:147] offset:2576")
    e("s_waitcnt lgkmcnt(0)")
    e("s_barrier")
    e("v_lshlrev_b32 v3, 3, v0")
    for w in range(4):
        e(f"ds_read_b64 v[{4+2*w}:{5+2*w}], v3 offset:{2560+2048*w}")
    e("s_waitcnt lgkmcnt(0)")
    e("v_add_f32 v4, v4, v6")
    e("v_add_f32 v5, v5, v7")
    e("v_add_f32 v8, v8, v10")
    e("v_add_f32 v9, v9, v11")
    e("v_add_f32 v4, v4, v8")
    e("v_add_f32 v5, v5, v9")
    e("buffer_store_dwordx2 v[4:5], v3, s[28:31], s20 offen")
    lab("L_p1_end")
    e("s_endpgm")
    return name, 148, 10752, 144


def gen_attn():
    name = "attn_kernel"
    nwg = 32 * NCHUNK
    kernel_begin(name)
    e(f"s_cmp_ge_u32 s2, {nwg}")
    e("s_cbranch_scc1 L_at_end")
    e("s_load_dwordx2 s[4:5], s[0:1], 8")
    e("s_load_dwordx2 s[6:7], s[0:1], 16")
    e("s_load_dwordx2 s[8:9], s[0:1], 88")
    e("s_waitcnt lgkmcnt(0)")
    srd(12, 4, 5, H * SK * DH * 2)
    srd(16, 6, 7, H * SK * DH * 2)
    srd(20, 8, 9, WS_USED)
    lg = NCHUNK.bit_length() - 1
    assert 1 << lg == NCHUNK
    e(f"s_lshr_b32 s24, s2, {lg}")
    e(f"s_and_b32 s25, s2, {NCHUNK-1}")
    e("v_cmp_gt_u32 vcc, 96, v0")
    e("s_and_saveexec_b64 s[26:27], vcc")
    e("s_cbranch_execz L_at_q_done")
    e("s_mul_i32 s28, s24, 768")
    e("v_lshlrev_b32 v1, 3, v0")
    e("v_add_u32 v1, s28, v1")
    for r in range(8):
        e(f"buffer_load_dwordx2 v[{2+2*r}:{3+2*r}], v1, s[20:23], 0 offen offset:{0}" if r == 0 else
          f"buffer_load_dwordx2 v[{2+2*r}:{3+2*r}], v1, s[20:23], s29 offen")
        if r == 0:
            e(f"s_mov_b32 s29, {QP_OFF + 24576}")
        elif r < 7:
            e("s_add_u32 s29, s29, 24576")
    e("s_waitcnt vmcnt(0)")
    for r in range(1, 8):
        e(f"v_add_f32 v2, v2, v{2+2*r}")
        e(f"v_add_f32 v3, v3, v{3+2*r}")
    e("v_cvt_pk_bf16_f32 v4, v2, v3")
    e("v_lshlrev_b32 v5, 2, v0")
    e("ds_write_b32 v5, v4")
    lab("L_at_q_done")
    e("s_mov_b64 exec, s[26:27]")
    e("s_waitcnt vmcnt(0) lgkmcnt(0)")
    e("s_barrier")
    e("v_and_b32 v1, 63, v0")
    e("v_and_b32 v2, 7, v1")
    e("v_lshrrev_b32 v3, 3, v1")
    e("v_lshlrev_b32 v4, 4, v2")
    for j in range(3):
        e(f"ds_read_b128 v[{8+4*j}:{11+4*j}], v4 offset:{128*j}")
    e("v_mul_u32_u24 v5, 384, v3")
    e("v_add_u32 v5, v5, v4")
    e("v_lshrrev_b32 v6, 6, v0")
    e("s_nop 0")
    e("v_readfirstlane_b32 s30, v6")
    e(f"s_mul_i32 s31, s24, {SK}")
    e(f"s_mul_i32 s32, s25, {KEYS_WG}")
    e("s_add_u32 s31, s31, s32")
    e(f"s_mul_i32 s32, s30, {KEYS_WAVE}")
    e("s_add_u32 s31, s31, s32")
    e("s_mul_i32 s31, s31, 384")
    for u in range(U):
        e(f"s_add_u32 s{36+u}, s31, {3072*u}")
    KB = 24
    VB = KB + 12 * U
    OB = VB + 12 * U
    SCB = OB + 24
    T = SCB + U
    vm, vl = T, T + 1
    t0, t1, t2, t3 = T + 2, T + 3, T + 4, T + 5
    nv = T + 6

    def issueK():
        for u in range(U):
            for j in range(3):
                e(f"buffer_load_dwordx4 v[{KB+12*u+4*j}:{KB+12*u+4*j+3}], v5, s[12:15], s{36+u} offen offset:{128*j}{NT}")

    def issueV():
        for u in range(U):
            for j in range(3):
                e(f"buffer_load_dwordx4 v[{VB+12*u+4*j}:{VB+12*u+4*j+3}], v5, s[16:19], s{36+u} offen offset:{128*j}{NT}")

    for i in range(24):
        e(f"v_mov_b32 v{OB+i}, 0")
    e(f"v_mov_b32 v{vm}, 0xff800000")
    e(f"v_mov_b32 v{vl}, 0")
    e("s_waitcnt lgkmcnt(0)")
    issueK()
    issueV()
    e(f"s_mov_b32 s33, {ITERS}")
    lab("L_at_loop")
    e(f"s_waitcnt vmcnt({3*U})")
    for j in range(3):
        for i in range(4):
            for u in range(U):
                k = KB + 12 * u + 4 * j + i
                q = 8 + 4 * j + i
                if j == 0 and i == 0:
                    e(f"v_dot2_f32_bf16 v{SCB+u}, v{k}, v{q}, 0")
                else:
                    e(f"v_dot2c_f32_bf16 v{SCB+u}, v{k}, v{q}")
    e("s_sub_u32 s33, s33, 1")
    e("s_cmp_eq_u32 s33, 0")
    e("s_cbranch_scc1 L_at_skipK")
    for u in range(U):
        e(f"s_add_u32 s{44+u}, s{36+u}, {3072*U}")
    for u in range(U):
        for j in range(3):
            e(f"buffer_load_dwordx4 v[{KB+12*u+4*j}:{KB+12*u+4*j+3}], v5, s[12:15], s{44+u} offen offset:{128*j}{NT}")
    lab("L_at_skipK")
    e("s_nop 1")
    for u in range(U):
        e(f"v_add_f32_dpp v{SCB+u}, v{SCB+u}, v{SCB+u} quad_perm:[1,0,3,2] row_mask:0xf bank_mask:0xf")
    e("s_nop 1")
    for u in range(U):
        e(f"v_add_f32_dpp v{SCB+u}, v{SCB+u}, v{SCB+u} quad_perm:[2,3,0,1] row_mask:0xf bank_mask:0xf")
    e("s_nop 1")
    for u in range(U):
        e(f"v_add_f32_dpp v{SCB+u}, v{SCB+u}, v{SCB+u} row_half_mirror row_mask:0xf bank_mask:0xf")
    assert U % 2 == 0
    for u in range(0, U, 2):
        a, b = SCB + u, SCB + u + 1
        e(f"v_cvt_pk_bf16_f32 v{t0}, v{a}, v{b}")
        e(f"v_lshlrev_b32 v{a}, 16, v{t0}")
        e(f"v_and_b32 v{b}, 0xffff0000, v{t0}")
        e(f"v_mul_f32 v{a}, {SCALE}, v{a}")
        e(f"v_mul_f32 v{b}, {SCALE}, v{b}")
        e(f"v_cvt_pk_bf16_f32 v{t0}, v{a}, v{b}")
        e(f"v_lshlrev_b32 v{a}, 16, v{t0}")
        e(f"v_and_b32 v{b}, 0xffff0000, v{t0}")
        e(f"v_mul_f32 v{a}, {LOG2E}, v{a}")
        e(f"v_mul_f32 v{b}, {LOG2E}, v{b}")
    e(f"v_max_f32 v{t0}, v{vm}, v{SCB}")
    for u in range(1, U, 2):
        if u + 1 < U:
            e(f"v_max3_f32 v{t0}, v{t0}, v{SCB+u}, v{SCB+u+1}")
        else:
            e(f"v_max_f32 v{t0}, v{t0}, v{SCB+u}")
    e(f"v_sub_f32 v{t1}, v{vm}, v{t0}")
    e(f"v_exp_f32 v{t1}, v{t1}")
    e(f"v_mov_b32 v{vm}, v{t0}")
    for u in range(U):
        e(f"v_sub_f32 v{SCB+u}, v{SCB+u}, v{t0}")
        e(f"v_exp_f32 v{SCB+u}, v{SCB+u}")
    e(f"v_mul_f32 v{vl}, v{vl}, v{t1}")
    for i in range(24):
        e(f"v_mul_f32 v{OB+i}, v{OB+i}, v{t1}")
    for u in range(U):
        e(f"v_add_f32 v{vl}, v{vl}, v{SCB+u}")
    e("s_cmp_eq_u32 s33, 0")
    e("s_cbranch_scc1 L_at_waitV0")
    e(f"s_waitcnt vmcnt({3*U})")
    e("s_branch L_at_waitV1")
    lab("L_at_waitV0")
    e("s_waitcnt vmcnt(0)")
    lab("L_at_waitV1")
    for u in range(U):
        for j in range(3):
            for i in range(4):
                v = VB + 12 * u + 4 * j + i
                o = OB + 8 * j + 2 * i
                ta, tb = (t0, t1) if (i & 1) == 0 else (t2, t3)
                e(f"v_lshlrev_b32 v{ta}, 16, v{v}")
                e(f"v_and_b32 v{tb}, 0xffff0000, v{v}")
                e(f"v_fmac_f32 v{o}, v{SCB+u}, v{ta}")
                e(f"v_fmac_f32 v{o+1}, v{SCB+u}, v{tb}")
    e("s_cmp_eq_u32 s33, 0")
    e("s_cbranch_scc1 L_at_done")
    for u in range(U):
        e(f"s_add_u32 s{36+u}, s{36+u}, {3072*U}")
    issueV()
    e("s_branch L_at_loop")
    lab("L_at_done")
    e("s_barrier")
    e("v_lshrrev_b32 v6, 3, v0")
    e("v_mul_u32_u24 v7, 768, v6")
    e("v_lshlrev_b32 v8, 5, v2")
    e("v_add_u32 v7, v7, v8")
    for j in range(3):
        e(f"ds_write_b128 v7, v[{OB+8*j}:{OB+8*j+3}] offset:{512+256*j}")
        e(f"ds_write_b128 v7, v[{OB+8*j+4}:{OB+8*j+7}] offset:{512+256*j+16}")
    e("v_lshlrev_b32 v8, 2, v6")
    e(f"ds_write_b32 v8, v{vm}")
    e(f"ds_write_b32 v8, v{vl} offset:128")
    e("s_waitcnt lgkmcnt(0)")
    e("s_barrier")
    e("v_cmp_gt_u32 vcc, 192, v0")
    e("s_and_saveexec_b64 s[26:27], vcc")
    e("s_cbranch_execz L_at_fin")
    e("v_mov_b32 v1, 0")
    for i in range(8):
        e(f"ds_read_b128 v[{24+4*i}:{27+4*i}], v1 offset:{16*i}")
        e(f"ds_read_b128 v[{56+4*i}:{59+4*i}], v1 offset:{128+16*i}")
    e("s_waitcnt lgkmcnt(0)")
    e("v_max_f32 v2, v24, v25")
    for i in range(2, 32, 2):
        e(f"v_max3_f32 v2, v2, v{24+i}, v{25+i}")
    for i in range(32):
        e(f"v_sub_f32 v{24+i}, v{24+i}, v2")
        e(f"v_exp_f32 v{24+i}, v{24+i}")
    e("v_mul_f32 v3, v24, v56")
    for i in range(1, 32):
        e(f"v_fmac_f32 v3, v{24+i}, v{56+i}")
    e("v_lshlrev_b32 v4, 2, v0")
    for i in range(32):
        e(f"ds_read_b32 v{56+i}, v4 offset:{512+768*i}")
    e("s_waitcnt lgkmcnt(0)")
    e("v_mul_f32 v5, v24, v56")
    for i in range(1, 32):
        e(f"v_fmac_f32 v5, v{24+i}, v{56+i}")
    e(f"s_mul_i32 s28, s2, 768")
    e(f"s_add_u32 s28, s28, {AP_OFF}")
    e("buffer_store_dword v5, v4, s[20:23], s28 offen")
    e("v_cmp_eq_u32 vcc, 0, v0")
    e("s_and_saveexec_b64 s[34:35], vcc")
    e("s_cbranch_execz L_at_fin")
    e("s_lshl_b32 s28, s2, 3")
    e(f"s_add_u32 s28, s28, {ML_OFF}")
    e("buffer_store_dwordx2 v[2:3], v1, s[20:23], s28 offen")
    lab("L_at_fin")
    lab("L_at_end")
    e("s_endpgm")
    return name, nv, 512 + 32 * 768, nwg


def gen_comb():
    name = "comb_kernel"
    kernel_begin(name)
    e("s_cmp_ge_u32 s2, 160")
    e("s_cbranch_scc1 L_cb_end")
    e("s_load_dwordx2 s[4:5], s[0:1], 32")
    e("s_load_dwordx2 s[6:7], s[0:1], 64")
    e("s_load_dwordx2 s[8:9], s[0:1], 88")
    e("s_waitcnt lgkmcnt(0)")
    srd(20, 8, 9, WS_USED)
    e("v_and_b32 v1, 63, v0")
    e("v_lshlrev_b32 v30, 2, v1")
    e("s_cmp_lt_u32 s2, 128")
    e("s_cbranch_scc0 L_cb_B")
    srd(12, 4, 5, 6144 * 1280)
    e("s_lshr_b32 s24, s2, 2")
    e("s_and_b32 s25, s2, 3")
    e("s_mul_i32 s26, s24, 192")
    e("s_mul_i32 s27, s25, 48")
    e("s_add_u32 s26, s26, s27")
    e("v_lshrrev_b32 v2, 6, v0")
    e("s_nop 0")
    e("v_readfirstlane_b32 s28, v2")
    e("s_cmp_eq_u32 s28, 0")
    e("s_cbranch_scc0 L_cb_A1")
    assert NCHUNK <= 64
    e(f"s_mul_i32 s29, s24, {NCHUNK*8}")
    e(f"s_add_u32 s29, s29, {ML_OFF}")
    e("v_lshlrev_b32 v2, 3, v1")
    e("v_mov_b32 v4, 0xff800000")
    e("v_mov_b32 v5, 0")
    e(f"v_cmp_gt_u32 vcc, {NCHUNK}, v1")
    e("s_and_saveexec_b64 s[30:31], vcc")
    e("buffer_load_dwordx2 v[4:5], v2, s[20:23], s29 offen")
    e("s_waitcnt vmcnt(0)")
    e("s_mov_b64 exec, s[30:31]")
    e("v_mov_b32 v3, v4")
    wave_allreduce("v_max_f32", 3, 6, 30)
    e("v_sub_f32 v4, v4, v3")
    e("v_exp_f32 v4, v4")
    e("s_nop 0")
    e("v_mul_f32 v5, v4, v5")
    wave_allreduce("v_add_f32", 5, 6, 30)
    e("v_rcp_f32 v5, v5")
    e("s_nop 0")
    e("v_mul_f32 v4, v4, v5")
    e("ds_write_b32 v30, v4")
    e("s_waitcnt lgkmcnt(0)")
    lab("L_cb_A1")
    e("s_barrier")
    e("v_cmp_gt_u32 vcc, 192, v0")
    e("s_and_saveexec_b64 s[30:31], vcc")
    e("s_cbranch_execz L_cb_A2")
    e("v_mul_u32_u24 v2, 1366, v0")
    e("v_lshrrev_b32 v2, 16, v2")
    e("v_mul_u32_u24 v3, 48, v2")
    e("v_sub_u32 v3, v0, v3")
    e(f"s_mul_i32 s29, s24, {NCHUNK*768}")
    e("s_mul_i32 s32, s25, 192")
    e("s_add_u32 s29, s29, s32")
    e(f"s_add_u32 s29, s29, {AP_OFF}")
    e("v_mul_u32_u24 v4, 768, v2")
    e("v_lshl_add_u32 v4, v3, 2, v4")
    ncc = NCHUNK // 4
    for i in range(ncc):
        e(f"buffer_load_dword v{40+i}, v4, s[20:23], s29 offen offset:{0}" if i == 0 else
          f"buffer_load_dword v{40+i}, v4, s[20:23], s33 offen")
        if i == 0:
            e(f"s_add_u32 s33, s29, {768*4}")
        elif i < ncc - 1:
            e(f"s_add_u32 s33, s33, {768*4}")
    e("v_lshlrev_b32 v5, 2, v2")
    for i in range(ncc):
        e(f"ds_read_b32 v{60+i}, v5 offset:{16*i}")
    e("s_waitcnt vmcnt(0) lgkmcnt(0)")
    e("v_mul_f32 v6, v40, v60")
    for i in range(1, ncc):
        e(f"v_fmac_f32 v6, v{40+i}, v{60+i}")
    e("v_lshlrev_b32 v7, 2, v0")
    e("ds_write_b32 v7, v6 offset:256")
    e("s_waitcnt lgkmcnt(0)")
    lab("L_cb_A2")
    e("s_mov_b64 exec, s[30:31]")
    e("s_barrier")
    e("v_cmp_gt_u32 vcc, 48, v0")
    e("s_and_saveexec_b64 s[30:31], vcc")
    e("s_cbranch_execz L_cb_A3")
    e("v_lshlrev_b32 v7, 2, v0")
    for g in range(4):
        e(f"ds_read_b32 v{8+g}, v7 offset:{256+192*g}")
    e("s_waitcnt lgkmcnt(0)")
    e("v_add_f32 v8, v8, v9")
    e("v_add_f32 v10, v10, v11")
    e("v_add_f32 v8, v8, v10")
    bf16r(8, 9)
    e("ds_write_b32 v7, v8 offset:1024")
    e("s_waitcnt lgkmcnt(0)")
    lab("L_cb_A3")
    e("s_mov_b64 exec, s[30:31]")
    e("s_branch L_cb_gemv")
    lab("L_cb_B")
    srd(12, 6, 7, 1536 * 1280)
    e("s_sub_u32 s24, s2, 128")
    e("s_mul_i32 s26, s24, 48")
    e("v_cmp_gt_u32 vcc, 48, v0")
    e("s_and_saveexec_b64 s[30:31], vcc")
    e("s_cbranch_execz L_cb_B1")
    e("s_lshl_b32 s29, s26, 2")
    e("v_lshlrev_b32 v7, 2, v0")
    e("v_add_u32 v4, s29, v7")
    for r in range(8):
        e(f"s_mov_b32 s33, {GP_OFF + 6144*r}")
        e(f"buffer_load_dword v{40+r}, v4, s[20:23], s33 offen")
        e(f"s_mov_b32 s33, {UP_OFF + 6144*r}")
        e(f"buffer_load_dword v{50+r}, v4, s[20:23], s33 offen")
    e("s_waitcnt vmcnt(0)")
    for r in range(1, 8):
        e(f"v_add_f32 v40, v40, v{40+r}")
        e(f"v_add_f32 v50, v50, v{50+r}")
    bf16r(40, 9)
    bf16r(50, 9)
    e(f"v_mul_f32 v8, {LOG2E}, v40")
    e("v_sub_f32 v8, 0, v8")
    e("v_exp_f32 v8, v8")
    e("s_nop 0")
    e("v_add_f32 v8, 1.0, v8")
    e("v_rcp_f32 v8, v8")
    e("s_nop 0")
    e("v_mul_f32 v8, v40, v8")
    bf16r(8, 9)
    e("v_mul_f32 v8, v8, v50")
    bf16r(8, 9)
    e("ds_write_b32 v7, v8 offset:1024")
    e("s_waitcnt lgkmcnt(0)")
    lab("L_cb_B1")
    e("s_mov_b64 exec, s[30:31]")
    lab("L_cb_gemv")
    e("s_barrier")
    e("v_cmp_gt_u32 vcc, 240, v0")
    e("s_and_saveexec_b64 s[30:31], vcc")
    e("s_cbranch_execz L_cb_G1")
    e("v_mul_u32_u24 v2, 820, v0")
    e("v_lshrrev_b32 v2, 16, v2")
    e("v_mul_u32_u24 v3, 80, v2")
    e("v_sub_u32 v3, v0, v3")
    e("v_lshlrev_b32 v4, 6, v2")
    for i in range(4):
        e(f"ds_read_b128 v[{32+4*i}:{35+4*i}], v4 offset:{1024+16*i}")
    e("v_mul_u32_u24 v5, 20480, v2")
    e("v_lshl_add_u32 v5, v3, 4, v5")
    e("s_mul_i32 s33, s26, 1280")
    for k in range(16):
        e(f"buffer_load_dwordx4 v[{56+4*k}:{59+4*k}], v5, s[12:15], s33 offen")
        if k < 15:
            e("s_add_u32 s33, s33, 1280")
    for i in range(8):
        e(f"v_mov_b32 v{10+i}, 0")
    e("s_waitcnt lgkmcnt(0)")
    for k in range(16):
        e(f"s_waitcnt vmcnt({15-k})")
        for i in range(4):
            w = 56 + 4 * k + i
            e(f"v_lshlrev_b32 v6, 16, v{w}")
            e(f"v_and_b32 v7, 0xffff0000, v{w}")
            e(f"v_fmac_f32 v{10+2*i}, v{32+k}, v6")
            e(f"v_fmac_f32 v{11+2*i}, v{32+k}, v7")
    e("v_mul_u32_u24 v6, 2560, v2")
    e("v_lshl_add_u32 v6, v3, 5, v6")
    e("ds_write_b128 v6, v[10:13] offset:2048")
    e("ds_write_b128 v6, v[14:17] offset:2064")
    e("s_waitcnt lgkmcnt(0)")
    lab("L_cb_G1")
    e("s_mov_b64 exec, s[30:31]")
    e("s_barrier")
    e("v_cmp_gt_u32 vcc, 160, v0")
    e("s_and_saveexec_b64 s[30:31], vcc")
    e("s_cbranch_execz L_cb_end")
    e("v_lshlrev_b32 v6, 4, v0")
    for g in range(3):
        e(f"ds_read_b128 v[{8+4*g}:{11+4*g}], v6 offset:{2048+2560*g}")
    e("s_waitcnt lgkmcnt(0)")
    for i in range(4):
        e(f"v_add_f32 v{8+i}, v{8+i}, v{12+i}")
        e(f"v_add_f32 v{8+i}, v{8+i}, v{16+i}")
    e("s_mul_i32 s33, s2, 2560")
    e(f"s_add_u32 s33, s33, {SP_OFF}")
    e("buffer_store_dwordx4 v[8:11], v6, s[20:23], s33 offen")
    lab("L_cb_end")
    e("s_endpgm")
    return name, 120, 2048 + 3 * 2560, 160


def gen_final():
    name = "final_kernel"
    kernel_begin(name)
    e("s_cmp_ge_u32 s2, 10")
    e("s_cbranch_scc1 L_fn_end")
    e("s_load_dwordx2 s[4:5], s[0:1], 0")
    e("s_load_dwordx2 s[6:7], s[0:1], 72")
    e("s_load_dwordx2 s[8:9], s[0:1], 88")
    e("s_waitcnt lgkmcnt(0)")
    srd(12, 4, 5, 1280)
    srd(16, 6, 7, 1280)
    srd(20, 8, 9, WS_USED)
    e("v_and_b32 v1, 63, v0")
    e("v_lshrrev_b32 v2, 6, v0")
    e("s_lshl_b32 s24, s2, 8")
    e("v_lshlrev_b32 v3, 2, v1")
    e("v_add_u32 v3, s24, v3")
    e("v_mul_u32_u24 v4, 81920, v2")
    e("v_add_u32 v4, v4, v3")
    e(f"s_mov_b32 s25, {SP_OFF}")
    for i in range(32):
        e(f"buffer_load_dword v{10+i}, v4, s[20:23], s25 offen")
        e("s_add_u32 s25, s25, 2560")
    e("v_mul_u32_u24 v5, 20480, v2")
    e("v_add_u32 v5, v5, v3")
    e(f"s_mov_b32 s25, {SP_OFF + 128*2560}")
    for i in range(8):
        e(f"buffer_load_dword v{44+i}, v5, s[20:23], s25 offen")
        e("s_add_u32 s25, s25, 2560")
    e("s_waitcnt vmcnt(0)")
    for i in range(1, 32):
        e(f"v_add_f32 v10, v10, v{10+i}")
    for i in range(1, 8):
        e(f"v_add_f32 v44, v44, v{44+i}")
    e("v_lshlrev_b32 v6, 3, v0")
    e("v_mov_b32 v11, v44")
    e("ds_write_b64 v6, v[10:11]")
    e("s_waitcnt lgkmcnt(0)")
    e("s_barrier")
    e("v_cmp_gt_u32 vcc, 64, v0")
    e("s_and_saveexec_b64 s[30:31], vcc")
    e("s_cbranch_execz L_fn_end")
    for g in range(4):
        e(f"ds_read_b64 v[{12+2*g}:{13+2*g}], v6 offset:{512*g}")
    e("v_lshlrev_b32 v7, 1, v1")
    e("s_lshl_b32 s24, s2, 7")
    e("v_add_u32 v7, s24, v7")
    e("buffer_load_ushort v8, v7, s[12:15], 0 offen")
    e("s_waitcnt vmcnt(0) lgkmcnt(0)")
    e("v_add_f32 v12, v12, v14")
    e("v_add_f32 v16, v16, v18")
    e("v_add_f32 v12, v12, v16")
    e("v_add_f32 v13, v13, v15")
    e("v_add_f32 v17, v17, v19")
    e("v_add_f32 v13, v13, v17")
    bf16r(12, 9)
    bf16r(13, 9)
    e(f"v_mul_f32 v14, {LOG2E}, v13")
    e("v_sub_f32 v14, 0, v14")
    e("v_exp_f32 v14, v14")
    e("s_nop 0")
    e("v_add_f32 v14, 1.0, v14")
    e("v_rcp_f32 v14, v14")
    e("s_nop 0")
    e("v_mul_f32 v14, v13, v14")
    bf16r(14, 9)
    e("v_mul_f32 v14, v12, v14")
    bf16r(14, 9)
    e("v_lshlrev_b32 v8, 16, v8")
    e("v_add_f32 v14, v8, v14")
    e("v_cvt_pk_bf16_f32 v14, v14, v14")
    e("buffer_store_short v14, v7, s[16:19], 0 offen")
    lab("L_fn_end")
    e("s_endpgm")
    return name, 56, 2048, 10


def main():
    kernels = [gen_proj1(), gen_attn(), gen_comb(), gen_final()]
    body = out[:]
    hdr = [f"; generated by gen/gen.py  U={U} NCHUNK={NCHUNK} NT={NT.strip()}"]
    for name, _, lds, grid in kernels:
        hdr.append(f"; @launch kernel={name} grid=({grid},1,1) block=(256,1,1) lds={lds}")
    hdr.append('.amdgcn_target "amdgcn-amd-amdhsa--gfx950"')
    hdr.append(".text")
    out.clear()
    out.append('.section .rodata,"a"')
    for name, vg, _, _ in kernels:
        out.append(".p2align 6")
        descriptor(name, vg)
    text = "\n".join(hdr + body + out) + "\n"
    path = f"cdna_kernels/{NAME}.s"
    with open(path, "w") as f:
        f.write(text)
    print("wrote", path, len(text), "bytes; kernels:", [(k[0], k[1]) for k in kernels])


if __name__ == "__main__":
    main()
```

```python
import sys

NAME = "recurrent_scan__mha_block_cached__glu_gated_swiglu__decode"

U = 8
NCHUNK = 16
NT = " nt"
for a in sys.argv[1:]:
    k, v = a.split("=")
    if k == "U":
        U = int(v)
    elif k == "NCHUNK":
        NCHUNK = int(v)
    elif k == "NT":
        NT = {0:"",1:" nt",2:" sc1",3:" sc0 sc1",4:" sc1 nt",5:" sc0 nt", 6:" sc0 sc1 nt"}[int(v)]

H, SK, DH, D, F = 32, 32768, 192, 640, 1536
KEYS_WG = SK // NCHUNK
KEYS_WAVE = KEYS_WG // 4
ITERS = KEYS_WAVE // (8 * U)
assert ITERS * 8 * U * 4 * NCHUNK == SK

QP_OFF = 0
GP_OFF = QP_OFF + 8 * 6144 * 4
UP_OFF = GP_OFF + 8 * 1536 * 4
ML_OFF = UP_OFF + 8 * 1536 * 4
AP_OFF = ML_OFF + 65536
SP_OFF = AP_OFF + 4 * 1024 * 1024
WS_USED = SP_OFF + 160 * 640 * 4

LOG2E = "0x3fb8aa3b"
SCALE = "0x3d93cd3a"
EPS = "0x3727c5ac"
INV640 = "0x3acccccd"

out = []


def e(s):
    out.append("    " + s)


def lab(s):
    out.append(s + ":")


def bf16r(v, t):
    e(f"v_cvt_pk_bf16_f32 v{t}, v{v}, v{v}")
    e(f"v_lshlrev_b32 v{v}, 16, v{t}")


def srd(dst, lo, hi, nbytes):
    e(f"s_mov_b32 s{dst}, s{lo}")
    e(f"s_mov_b32 s{dst+1}, s{hi}")
    e(f"s_mov_b32 s{dst+2}, {nbytes}")
    e(f"s_mov_b32 s{dst+3}, 0x00020000")


def wave_allreduce(op, v, t, vl4):
    for m in (1, 2, 4, 8, 16, 32):
        e(f"v_xor_b32 v{t}, {m*4}, v{vl4}")
        e(f"ds_bpermute_b32 v{t}, v{t}, v{v}")
        e("s_waitcnt lgkmcnt(0)")
        e(f"{op} v{v}, v{v}, v{t}")


def kernel_begin(name):
    out.append(f".globl {name}")
    out.append(".p2align 8")
    out.append(f".type {name},@function")
    lab(name)


def descriptor(name, vgpr, sgpr=96):
    v = (vgpr + 7) // 8 * 8
    out.append(f".amdhsa_kernel {name}")
    out.append(f"  .amdhsa_next_free_vgpr {v}")
    out.append(f"  .amdhsa_next_free_sgpr {sgpr}")
    out.append(f"  .amdhsa_accum_offset {v}")
    out.append("  .amdhsa_group_segment_fixed_size 0")
    out.append("  .amdhsa_kernarg_size 96")
    out.append("  .amdhsa_user_sgpr_count 2")
    out.append("  .amdhsa_user_sgpr_kernarg_segment_ptr 1")
    out.append("  .amdhsa_system_sgpr_workgroup_id_x 1")
    out.append(".end_amdhsa_kernel")


def layernorm_to_lds(xs, lds_off, vm_pending=0, between=None):
    srd(40, xs, xs + 1, 1280)
    e("v_and_b32 v1, 63, v0")
    e("v_mul_u32_u24 v2, 20, v1")
    for i in range(5):
        e(f"buffer_load_dword v{3+i}, v2, s[40:43], 0 offen offset:{4*i}")
    e("v_lshlrev_b32 v30, 2, v1")
    if between is not None:
        between()
    e(f"s_waitcnt vmcnt({vm_pending})")
    for i in range(5):
        e(f"v_lshlrev_b32 v{10+2*i}, 16, v{3+i}")
        e(f"v_and_b32 v{11+2*i}, 0xffff0000, v{3+i}")
    e("v_add_f32 v20, v10, v11")
    for i in range(2, 10):
        e(f"v_add_f32 v20, v20, v{10+i}")
    wave_allreduce("v_add_f32", 20, 21, 30)
    e(f"v_mul_f32 v20, {INV640}, v20")
    e("v_sub_f32 v22, v10, v20")
    e("v_mul_f32 v23, v22, v22")
    for i in range(1, 10):
        e(f"v_sub_f32 v22, v{10+i}, v20")
        e("v_fmac_f32 v23, v22, v22")
    wave_allreduce("v_add_f32", 23, 21, 30)
    e(f"v_mul_f32 v23, {INV640}, v23")
    bf16r(20, 21)
    bf16r(23, 21)
    e(f"v_add_f32 v23, {EPS}, v23")
    bf16r(23, 21)
    e("v_sqrt_f32 v23, v23")
    e("s_nop 0")
    bf16r(23, 21)
    e("v_rcp_f32 v24, v23")
    e("s_nop 0")
    for i in range(10):
        e(f"v_sub_f32 v25, v{10+i}, v20")
        bf16r(25, 21)
        e("v_mul_f32 v26, v25, v24")
        e("v_fma_f32 v27, -v26, v23, v25")
        e("v_fma_f32 v26, v27, v24, v26")
        bf16r(26, 21)
        e(f"v_mov_b32 v{10+i}, v26")
    e("v_mul_u32_u24 v28, 40, v1")
    for i in range(10):
        e(f"ds_write_b32 v28, v{10+i} offset:{lds_off + 4*i}")
    e("s_waitcnt lgkmcnt(0)")


def gen_proj1():
    name = "proj1_kernel"
    kernel_begin(name)
    e("s_cmp_ge_u32 s2, 144")
    e("s_cbranch_scc1 L_p1_end")
    e("s_load_dwordx2 s[4:5], s[0:1], 0")
    e("s_load_dwordx2 s[6:7], s[0:1], 24")
    e("s_load_dwordx2 s[8:9], s[0:1], 48")
    e("s_load_dwordx2 s[10:11], s[0:1], 56")
    e("s_load_dwordx2 s[12:13], s[0:1], 88")
    e("s_waitcnt lgkmcnt(0)")
    e("s_cmp_lt_u32 s2, 96")
    e("s_cbranch_scc0 L_p1_b")
    e("s_mov_b32 s14, s6")
    e("s_mov_b32 s15, s7")
    e("s_mov_b32 s16, 12288")
    e(f"s_mov_b32 s17, {640*12288}")
    e("s_mul_i32 s19, s2, 43691")
    e("s_lshr_b32 s19, s19, 19")
    e("s_mul_i32 s18, s19, 12")
    e("s_sub_u32 s18, s2, s18")
    e("s_mul_i32 s20, s19, 24576")
    e(f"s_add_u32 s20, s20, {QP_OFF}")
    e("s_branch L_p1_dec")
    lab("L_p1_b")
    e("s_sub_u32 s21, s2, 96")
    e("s_mov_b32 s14, s8")
    e("s_mov_b32 s15, s9")
    e(f"s_mov_b32 s20, {GP_OFF}")
    e("s_cmp_lt_u32 s21, 24")
    e("s_cbranch_scc1 L_p1_c")
    e("s_sub_u32 s21, s21, 24")
    e("s_mov_b32 s14, s10")
    e("s_mov_b32 s15, s11")
    e(f"s_mov_b32 s20, {UP_OFF}")
    lab("L_p1_c")
    e("s_mov_b32 s16, 3072")
    e(f"s_mov_b32 s17, {640*3072}")
    e("s_mul_i32 s19, s21, 21846")
    e("s_lshr_b32 s19, s19, 16")
    e("s_mul_i32 s18, s19, 3")
    e("s_sub_u32 s18, s21, s18")
    e("s_mul_i32 s22, s19, 6144")
    e("s_add_u32 s20, s20, s22")
    lab("L_p1_dec")
    e("s_lshl_b32 s22, s18, 11")
    e("s_add_u32 s20, s20, s22")
    srd(24, 14, 15, "s17")
    srd(28, 12, 13, WS_USED)
    e("v_lshrrev_b32 v31, 6, v0")
    e("s_nop 0")
    e("v_readfirstlane_b32 s32, v31")
    e("s_mul_i32 s33, s19, 80")
    e("s_mul_i32 s34, s32, 20")
    e("s_add_u32 s33, s33, s34")
    e("s_mul_i32 s35, s33, s16")
    def issue_w():
        e("v_lshlrev_b32 v55, 4, v1")
        e("s_lshl_b32 s34, s18, 10")
        e("v_add_u32 v55, s34, v55")
        for k in range(20):
            e(f"buffer_load_dwordx4 v[{56+4*k}:{59+4*k}], v55, s[24:27], s35 offen")
            if k < 19:
                e("s_add_u32 s35, s35, s16")
    layernorm_to_lds(4, 0, vm_pending=20, between=issue_w)
    e("s_barrier")
    e("s_lshl_b32 s34, s33, 2")
    e("v_mov_b32 v31, s34")
    for i in range(5):
        e(f"ds_read_b128 v[{32+4*i}:{35+4*i}], v31 offset:{16*i}")
    for i in range(8):
        e(f"v_mov_b32 v{140+i}, 0")
    e("s_waitcnt lgkmcnt(0)")
    for k in range(20):
        e(f"s_waitcnt vmcnt({19-k})")
        for i in range(4):
            w = 56 + 4 * k + i
            e(f"v_lshlrev_b32 v3, 16, v{w}")
            e(f"v_and_b32 v4, 0xffff0000, v{w}")
            e(f"v_fmac_f32 v{140+2*i}, v{32+k}, v3")
            e(f"v_fmac_f32 v{141+2*i}, v{32+k}, v4")
    e("v_lshlrev_b32 v3, 5, v0")
    e("ds_write_b128 v3, v[140:143] offset:2560")
    e("ds_write_b128 v3, v[144:147] offset:2576")
    e("s_waitcnt lgkmcnt(0)")
    e("s_barrier")
    e("v_lshlrev_b32 v3, 3, v0")
    for w in range(4):
        e(f"ds_read_b64 v[{4+2*w}:{5+2*w}], v3 offset:{2560+2048*w}")
    e("s_waitcnt lgkmcnt(0)")
    e("v_add_f32 v4, v4, v6")
    e("v_add_f32 v5, v5, v7")
    e("v_add_f32 v8, v8, v10")
    e("v_add_f32 v9, v9, v11")
    e("v_add_f32 v4, v4, v8")
    e("v_add_f32 v5, v5, v9")
    e("buffer_store_dwordx2 v[4:5], v3, s[28:31], s20 offen")
    lab("L_p1_end")
    e("s_endpgm")
    return name, 148, 10752, 144


def gen_attn():
    name = "attn_kernel"
    nwg = 32 * NCHUNK
    kernel_begin(name)
    e(f"s_cmp_ge_u32 s2, {nwg}")
    e("s_cbranch_scc1 L_at_end")
    e("s_load_dwordx2 s[4:5], s[0:1], 8")
    e("s_load_dwordx2 s[6:7], s[0:1], 16")
    e("s_load_dwordx2 s[8:9], s[0:1], 88")
    e("s_waitcnt lgkmcnt(0)")
    srd(12, 4, 5, H * SK * DH * 2)
    srd(16, 6, 7, H * SK * DH * 2)
    srd(20, 8, 9, WS_USED)
    lg = NCHUNK.bit_length() - 1
    assert 1 << lg == NCHUNK
    e(f"s_lshr_b32 s24, s2, {lg}")
    e(f"s_and_b32 s25, s2, {NCHUNK-1}")
    e("v_cmp_gt_u32 vcc, 96, v0")
    e("s_and_saveexec_b64 s[26:27], vcc")
    e("s_cbranch_execz L_at_q_done")
    e("s_mul_i32 s28, s24, 768")
    e("v_lshlrev_b32 v1, 3, v0")
    e("v_add_u32 v1, s28, v1")
    for r in range(8):
        e(f"buffer_load_dwordx2 v[{2+2*r}:{3+2*r}], v1, s[20:23], 0 offen offset:{0}" if r == 0 else
          f"buffer_load_dwordx2 v[{2+2*r}:{3+2*r}], v1, s[20:23], s29 offen")
        if r == 0:
            e(f"s_mov_b32 s29, {QP_OFF + 24576}")
        elif r < 7:
            e("s_add_u32 s29, s29, 24576")
    e("s_waitcnt vmcnt(0)")
    for r in range(1, 8):
        e(f"v_add_f32 v2, v2, v{2+2*r}")
        e(f"v_add_f32 v3, v3, v{3+2*r}")
    e("v_cvt_pk_bf16_f32 v4, v2, v3")
    e("v_lshlrev_b32 v5, 2, v0")
    e("ds_write_b32 v5, v4")
    lab("L_at_q_done")
    e("s_mov_b64 exec, s[26:27]")
    e("s_waitcnt vmcnt(0) lgkmcnt(0)")
    e("s_barrier")
    e("v_and_b32 v1, 63, v0")
    e("v_and_b32 v2, 7, v1")
    e("v_lshrrev_b32 v3, 3, v1")
    e("v_lshlrev_b32 v4, 4, v2")
    for j in range(3):
        e(f"ds_read_b128 v[{8+4*j}:{11+4*j}], v4 offset:{128*j}")
    e("v_mul_u32_u24 v5, 384, v3")
    e("v_add_u32 v5, v5, v4")
    e("v_lshrrev_b32 v6, 6, v0")
    e("s_nop 0")
    e("v_readfirstlane_b32 s30, v6")
    e(f"s_mul_i32 s31, s24, {SK}")
    e(f"s_mul_i32 s32, s25, {KEYS_WG}")
    e("s_add_u32 s31, s31, s32")
    e(f"s_mul_i32 s32, s30, {KEYS_WAVE}")
    e("s_add_u32 s31, s31, s32")
    e("s_mul_i32 s31, s31, 384")
    for u in range(U):
        e(f"s_add_u32 s{36+u}, s31, {3072*u}")
    KB = 24
    VB = KB + 12 * U
    OB = VB + 12 * U
    SCB = OB + 24
    T = SCB + U
    vm, vl = T, T + 1
    t0, t1, t2, t3 = T + 2, T + 3, T + 4, T + 5
    nv = T + 6

    def issueK():
        for u in range(U):
            for j in range(3):
                e(f"buffer_load_dwordx4 v[{KB+12*u+4*j}:{KB+12*u+4*j+3}], v5, s[12:15], s{36+u} offen offset:{128*j}{NT}")

    def issueV():
        for u in range(U):
            for j in range(3):
                e(f"buffer_load_dwordx4 v[{VB+12*u+4*j}:{VB+12*u+4*j+3}], v5, s[16:19], s{36+u} offen offset:{128*j}{NT}")

    for i in range(24):
        e(f"v_mov_b32 v{OB+i}, 0")
    e(f"v_mov_b32 v{vm}, 0xff800000")
    e(f"v_mov_b32 v{vl}, 0")
    e("s_waitcnt lgkmcnt(0)")
    issueK()
    issueV()
    e(f"s_mov_b32 s33, {ITERS}")
    lab("L_at_loop")
    e(f"s_waitcnt vmcnt({3*U})")
    for j in range(3):
        for i in range(4):
            for u in range(U):
                k = KB + 12 * u + 4 * j + i
                q = 8 + 4 * j + i
                if j == 0 and i == 0:
                    e(f"v_dot2_f32_bf16 v{SCB+u}, v{k}, v{q}, 0")
                else:
                    e(f"v_dot2c_f32_bf16 v{SCB+u}, v{k}, v{q}")
    e("s_sub_u32 s33, s33, 1")
    e("s_cmp_eq_u32 s33, 0")
    e("s_cbranch_scc1 L_at_skipK")
    for u in range(U):
        e(f"s_add_u32 s{44+u}, s{36+u}, {3072*U}")
    for u in range(U):
        for j in range(3):
            e(f"buffer_load_dwordx4 v[{KB+12*u+4*j}:{KB+12*u+4*j+3}], v5, s[12:15], s{44+u} offen offset:{128*j}{NT}")
    lab("L_at_skipK")
    e("s_nop 1")
    for u in range(U):
        e(f"v_add_f32_dpp v{SCB+u}, v{SCB+u}, v{SCB+u} quad_perm:[1,0,3,2] row_mask:0xf bank_mask:0xf")
    e("s_nop 1")
    for u in range(U):
        e(f"v_add_f32_dpp v{SCB+u}, v{SCB+u}, v{SCB+u} quad_perm:[2,3,0,1] row_mask:0xf bank_mask:0xf")
    e("s_nop 1")
    for u in range(U):
        e(f"v_add_f32_dpp v{SCB+u}, v{SCB+u}, v{SCB+u} row_half_mirror row_mask:0xf bank_mask:0xf")
    assert U % 2 == 0
    for u in range(0, U, 2):
        a, b = SCB + u, SCB + u + 1
        e(f"v_cvt_pk_bf16_f32 v{t0}, v{a}, v{b}")
        e(f"v_lshlrev_b32 v{a}, 16, v{t0}")
        e(f"v_and_b32 v{b}, 0xffff0000, v{t0}")
        e(f"v_mul_f32 v{a}, {SCALE}, v{a}")
        e(f"v_mul_f32 v{b}, {SCALE}, v{b}")
        e(f"v_cvt_pk_bf16_f32 v{t0}, v{a}, v{b}")
        e(f"v_lshlrev_b32 v{a}, 16, v{t0}")
        e(f"v_and_b32 v{b}, 0xffff0000, v{t0}")
        e(f"v_mul_f32 v{a}, {LOG2E}, v{a}")
        e(f"v_mul_f32 v{b}, {LOG2E}, v{b}")
    e(f"v_max_f32 v{t0}, v{vm}, v{SCB}")
    for u in range(1, U, 2):
        if u + 1 < U:
            e(f"v_max3_f32 v{t0}, v{t0}, v{SCB+u}, v{SCB+u+1}")
        else:
            e(f"v_max_f32 v{t0}, v{t0}, v{SCB+u}")
    e(f"v_sub_f32 v{t1}, v{vm}, v{t0}")
    e(f"v_exp_f32 v{t1}, v{t1}")
    e(f"v_mov_b32 v{vm}, v{t0}")
    for u in range(U):
        e(f"v_sub_f32 v{SCB+u}, v{SCB+u}, v{t0}")
        e(f"v_exp_f32 v{SCB+u}, v{SCB+u}")
    e(f"v_mul_f32 v{vl}, v{vl}, v{t1}")
    for i in range(24):
        e(f"v_mul_f32 v{OB+i}, v{OB+i}, v{t1}")
    for u in range(U):
        e(f"v_add_f32 v{vl}, v{vl}, v{SCB+u}")
    e("s_cmp_eq_u32 s33, 0")
    e("s_cbranch_scc1 L_at_waitV0")
    e(f"s_waitcnt vmcnt({3*U})")
    e("s_branch L_at_waitV1")
    lab("L_at_waitV0")
    e("s_waitcnt vmcnt(0)")
    lab("L_at_waitV1")
    for u in range(U):
        for j in range(3):
            for i in range(4):
                v = VB + 12 * u + 4 * j + i
                o = OB + 8 * j + 2 * i
                ta, tb = (t0, t1) if (i & 1) == 0 else (t2, t3)
                e(f"v_lshlrev_b32 v{ta}, 16, v{v}")
                e(f"v_and_b32 v{tb}, 0xffff0000, v{v}")
                e(f"v_fmac_f32 v{o}, v{SCB+u}, v{ta}")
                e(f"v_fmac_f32 v{o+1}, v{SCB+u}, v{tb}")
    e("s_cmp_eq_u32 s33, 0")
    e("s_cbranch_scc1 L_at_done")
    for u in range(U):
        e(f"s_add_u32 s{36+u}, s{36+u}, {3072*U}")
    issueV()
    e("s_branch L_at_loop")
    lab("L_at_done")
    e("s_barrier")
    e("v_lshrrev_b32 v6, 3, v0")
    e("v_mul_u32_u24 v7, 768, v6")
    e("v_lshlrev_b32 v8, 5, v2")
    e("v_add_u32 v7, v7, v8")
    for j in range(3):
        e(f"ds_write_b128 v7, v[{OB+8*j}:{OB+8*j+3}] offset:{512+256*j}")
        e(f"ds_write_b128 v7, v[{OB+8*j+4}:{OB+8*j+7}] offset:{512+256*j+16}")
    e("v_lshlrev_b32 v8, 2, v6")
    e(f"ds_write_b32 v8, v{vm}")
    e(f"ds_write_b32 v8, v{vl} offset:128")
    e("s_waitcnt lgkmcnt(0)")
    e("s_barrier")
    e("v_cmp_gt_u32 vcc, 192, v0")
    e("s_and_saveexec_b64 s[26:27], vcc")
    e("s_cbranch_execz L_at_fin")
    e("v_mov_b32 v1, 0")
    for i in range(8):
        e(f"ds_read_b128 v[{24+4*i}:{27+4*i}], v1 offset:{16*i}")
        e(f"ds_read_b128 v[{56+4*i}:{59+4*i}], v1 offset:{128+16*i}")
    e("s_waitcnt lgkmcnt(0)")
    e("v_max_f32 v2, v24, v25")
    for i in range(2, 32, 2):
        e(f"v_max3_f32 v2, v2, v{24+i}, v{25+i}")
    for i in range(32):
        e(f"v_sub_f32 v{24+i}, v{24+i}, v2")
        e(f"v_exp_f32 v{24+i}, v{24+i}")
    e("v_mul_f32 v3, v24, v56")
    for i in range(1, 32):
        e(f"v_fmac_f32 v3, v{24+i}, v{56+i}")
    e("v_lshlrev_b32 v4, 2, v0")
    for i in range(32):
        e(f"ds_read_b32 v{56+i}, v4 offset:{512+768*i}")
    e("s_waitcnt lgkmcnt(0)")
    e("v_mul_f32 v5, v24, v56")
    for i in range(1, 32):
        e(f"v_fmac_f32 v5, v{24+i}, v{56+i}")
    e(f"s_mul_i32 s28, s2, 768")
    e(f"s_add_u32 s28, s28, {AP_OFF}")
    e("buffer_store_dword v5, v4, s[20:23], s28 offen")
    e("v_cmp_eq_u32 vcc, 0, v0")
    e("s_and_saveexec_b64 s[34:35], vcc")
    e("s_cbranch_execz L_at_fin")
    e("s_lshl_b32 s28, s2, 3")
    e(f"s_add_u32 s28, s28, {ML_OFF}")
    e("buffer_store_dwordx2 v[2:3], v1, s[20:23], s28 offen")
    lab("L_at_fin")
    lab("L_at_end")
    e("s_endpgm")
    return name, nv, 512 + 32 * 768, nwg


def gen_comb():
    name = "comb_kernel"
    kernel_begin(name)
    e("s_cmp_ge_u32 s2, 160")
    e("s_cbranch_scc1 L_cb_end")
    e("s_load_dwordx2 s[4:5], s[0:1], 32")
    e("s_load_dwordx2 s[6:7], s[0:1], 64")
    e("s_load_dwordx2 s[8:9], s[0:1], 88")
    e("s_waitcnt lgkmcnt(0)")
    srd(20, 8, 9, WS_USED)
    e("v_and_b32 v1, 63, v0")
    e("v_lshlrev_b32 v30, 2, v1")
    e("s_cmp_lt_u32 s2, 128")
    e("s_cbranch_scc0 L_cb_Bsel")
    srd(12, 4, 5, 6144 * 1280)
    e("s_lshr_b32 s24, s2, 2")
    e("s_and_b32 s25, s2, 3")
    e("s_mul_i32 s26, s24, 192")
    e("s_mul_i32 s27, s25, 48")
    e("s_add_u32 s26, s26, s27")
    e("s_branch L_cb_sel")
    lab("L_cb_Bsel")
    srd(12, 6, 7, 1536 * 1280)
    e("s_sub_u32 s24, s2, 128")
    e("s_mul_i32 s26, s24, 48")
    lab("L_cb_sel")
    e("v_cmp_gt_u32 vcc, 240, v0")
    e("s_and_saveexec_b64 s[30:31], vcc")
    e("v_mul_u32_u24 v2, 820, v0")
    e("v_lshrrev_b32 v2, 16, v2")
    e("v_mul_u32_u24 v3, 80, v2")
    e("v_sub_u32 v3, v0, v3")
    e("v_mul_u32_u24 v5, 20480, v2")
    e("v_lshl_add_u32 v5, v3, 4, v5")
    e("s_mul_i32 s33, s26, 1280")
    for k in range(16):
        e(f"buffer_load_dwordx4 v[{64+4*k}:{67+4*k}], v5, s[12:15], s33 offen")
        if k < 15:
            e("s_add_u32 s33, s33, 1280")
    e("s_mov_b64 exec, s[30:31]")
    e("s_cmp_lt_u32 s2, 128")
    e("s_cbranch_scc0 L_cb_B")
    e("v_lshrrev_b32 v6, 6, v0")
    e("s_nop 0")
    e("v_readfirstlane_b32 s28, v6")
    e("s_cmp_eq_u32 s28, 0")
    e("s_cbranch_scc0 L_cb_A1")
    assert NCHUNK <= 64
    e(f"s_mul_i32 s29, s24, {NCHUNK*8}")
    e(f"s_add_u32 s29, s29, {ML_OFF}")
    e("v_lshlrev_b32 v6, 3, v1")
    e("v_mov_b32 v8, 0xff800000")
    e("v_mov_b32 v9, 0")
    e(f"v_cmp_gt_u32 vcc, {NCHUNK}, v1")
    e("s_and_saveexec_b64 s[30:31], vcc")
    e("buffer_load_dwordx2 v[8:9], v6, s[20:23], s29 offen")
    e("s_waitcnt vmcnt(0)")
    e("s_mov_b64 exec, s[30:31]")
    e("v_mov_b32 v7, v8")
    wave_allreduce("v_max_f32", 7, 6, 30)
    e("v_sub_f32 v8, v8, v7")
    e("v_exp_f32 v8, v8")
    e("s_nop 0")
    e("v_mul_f32 v9, v8, v9")
    wave_allreduce("v_add_f32", 9, 6, 30)
    e("v_rcp_f32 v9, v9")
    e("s_nop 0")
    e("v_mul_f32 v8, v8, v9")
    e("ds_write_b32 v30, v8")
    e("s_waitcnt lgkmcnt(0)")
    lab("L_cb_A1")
    e("s_barrier")
    e("v_cmp_gt_u32 vcc, 192, v0")
    e("s_and_saveexec_b64 s[30:31], vcc")
    e("s_cbranch_execz L_cb_A2")
    e("v_mul_u32_u24 v6, 1366, v0")
    e("v_lshrrev_b32 v6, 16, v6")
    e("v_mul_u32_u24 v7, 48, v6")
    e("v_sub_u32 v7, v0, v7")
    e(f"s_mul_i32 s29, s24, {NCHUNK*768}")
    e("s_mul_i32 s32, s25, 192")
    e("s_add_u32 s29, s29, s32")
    e(f"s_add_u32 s29, s29, {AP_OFF}")
    e("v_mul_u32_u24 v8, 768, v6")
    e("v_lshl_add_u32 v8, v7, 2, v8")
    ncc = NCHUNK // 4
    assert ncc <= 16
    for i in range(ncc):
        e(f"buffer_load_dword v{32+i}, v8, s[20:23], s29 offen" if i == 0 else
          f"buffer_load_dword v{32+i}, v8, s[20:23], s33 offen")
        if i == 0:
            e(f"s_add_u32 s33, s29, {768*4}")
        elif i < ncc - 1:
            e(f"s_add_u32 s33, s33, {768*4}")
    e("v_lshlrev_b32 v9, 2, v6")
    for i in range(ncc):
        e(f"ds_read_b32 v{12+i}, v9 offset:{16*i}")
    e("s_waitcnt vmcnt(0) lgkmcnt(0)")
    e("v_mul_f32 v10, v32, v12")
    for i in range(1, ncc):
        e(f"v_fmac_f32 v10, v{32+i}, v{12+i}")
    e("v_lshlrev_b32 v11, 2, v0")
    e("ds_write_b32 v11, v10 offset:256")
    e("s_waitcnt lgkmcnt(0)")
    lab("L_cb_A2")
    e("s_mov_b64 exec, s[30:31]")
    e("s_barrier")
    e("v_cmp_gt_u32 vcc, 48, v0")
    e("s_and_saveexec_b64 s[30:31], vcc")
    e("s_cbranch_execz L_cb_A3")
    e("v_lshlrev_b32 v7, 2, v0")
    for g in range(4):
        e(f"ds_read_b32 v{8+g}, v7 offset:{256+192*g}")
    e("s_waitcnt lgkmcnt(0)")
    e("v_add_f32 v8, v8, v9")
    e("v_add_f32 v10, v10, v11")
    e("v_add_f32 v8, v8, v10")
    bf16r(8, 9)
    e("ds_write_b32 v7, v8 offset:1024")
    e("s_waitcnt lgkmcnt(0)")
    lab("L_cb_A3")
    e("s_mov_b64 exec, s[30:31]")
    e("s_branch L_cb_gemv")
    lab("L_cb_B")
    e("v_cmp_gt_u32 vcc, 48, v0")
    e("s_and_saveexec_b64 s[30:31], vcc")
    e("s_cbranch_execz L_cb_B1")
    e("s_lshl_b32 s29, s26, 2")
    e("v_lshlrev_b32 v7, 2, v0")
    e("v_add_u32 v6, s29, v7")
    for r in range(8):
        e(f"s_mov_b32 s33, {GP_OFF + 6144*r}")
        e(f"buffer_load_dword v{32+r}, v6, s[20:23], s33 offen")
        e(f"s_mov_b32 s33, {UP_OFF + 6144*r}")
        e(f"buffer_load_dword v{40+r}, v6, s[20:23], s33 offen")
    e("s_waitcnt vmcnt(0)")
    for r in range(1, 8):
        e(f"v_add_f32 v32, v32, v{32+r}")
        e(f"v_add_f32 v40, v40, v{40+r}")
    bf16r(32, 9)
    bf16r(40, 9)
    e(f"v_mul_f32 v8, {LOG2E}, v32")
    e("v_sub_f32 v8, 0, v8")
    e("v_exp_f32 v8, v8")
    e("s_nop 0")
    e("v_add_f32 v8, 1.0, v8")
    e("v_rcp_f32 v8, v8")
    e("s_nop 0")
    e("v_mul_f32 v8, v32, v8")
    bf16r(8, 9)
    e("v_mul_f32 v8, v8, v40")
    bf16r(8, 9)
    e("ds_write_b32 v7, v8 offset:1024")
    e("s_waitcnt lgkmcnt(0)")
    lab("L_cb_B1")
    e("s_mov_b64 exec, s[30:31]")
    lab("L_cb_gemv")
    e("s_barrier")
    e("v_cmp_gt_u32 vcc, 240, v0")
    e("s_and_saveexec_b64 s[30:31], vcc")
    e("s_cbranch_execz L_cb_G1")
    e("v_lshlrev_b32 v4, 6, v2")
    for i in range(4):
        e(f"ds_read_b128 v[{32+4*i}:{35+4*i}], v4 offset:{1024+16*i}")
    for i in range(8):
        e(f"v_mov_b32 v{10+i}, 0")
    e("s_waitcnt lgkmcnt(0)")
    for k in range(16):
        e(f"s_waitcnt vmcnt({15-k})")
        for i in range(4):
            w = 64 + 4 * k + i
            e(f"v_lshlrev_b32 v6, 16, v{w}")
            e(f"v_and_b32 v7, 0xffff0000, v{w}")
            e(f"v_fmac_f32 v{10+2*i}, v{32+k}, v6")
            e(f"v_fmac_f32 v{11+2*i}, v{32+k}, v7")
    e("v_mul_u32_u24 v6, 2560, v2")
    e("v_lshl_add_u32 v6, v3, 5, v6")
    e("ds_write_b128 v6, v[10:13] offset:2048")
    e("ds_write_b128 v6, v[14:17] offset:2064")
    e("s_waitcnt lgkmcnt(0)")
    lab("L_cb_G1")
    e("s_mov_b64 exec, s[30:31]")
    e("s_barrier")
    e("v_cmp_gt_u32 vcc, 160, v0")
    e("s_and_saveexec_b64 s[30:31], vcc")
    e("s_cbranch_execz L_cb_end")
    e("v_lshlrev_b32 v6, 4, v0")
    for g in range(3):
        e(f"ds_read_b128 v[{8+4*g}:{11+4*g}], v6 offset:{2048+2560*g}")
    e("s_waitcnt lgkmcnt(0)")
    for i in range(4):
        e(f"v_add_f32 v{8+i}, v{8+i}, v{12+i}")
        e(f"v_add_f32 v{8+i}, v{8+i}, v{16+i}")
    e("s_mul_i32 s33, s2, 2560")
    e(f"s_add_u32 s33, s33, {SP_OFF}")
    e("buffer_store_dwordx4 v[8:11], v6, s[20:23], s33 offen")
    lab("L_cb_end")
    e("s_endpgm")
    return name, 128, 2048 + 3 * 2560, 160


def gen_final():
    name = "final_kernel"
    kernel_begin(name)
    e("s_cmp_ge_u32 s2, 10")
    e("s_cbranch_scc1 L_fn_end")
    e("s_load_dwordx2 s[4:5], s[0:1], 0")
    e("s_load_dwordx2 s[6:7], s[0:1], 72")
    e("s_load_dwordx2 s[8:9], s[0:1], 88")
    e("s_waitcnt lgkmcnt(0)")
    srd(12, 4, 5, 1280)
    srd(16, 6, 7, 1280)
    srd(20, 8, 9, WS_USED)
    e("v_and_b32 v1, 63, v0")
    e("v_lshrrev_b32 v2, 6, v0")
    e("s_lshl_b32 s24, s2, 8")
    e("v_lshlrev_b32 v3, 2, v1")
    e("v_add_u32 v3, s24, v3")
    e("v_mul_u32_u24 v4, 81920, v2")
    e("v_add_u32 v4, v4, v3")
    e(f"s_mov_b32 s25, {SP_OFF}")
    for i in range(32):
        e(f"buffer_load_dword v{10+i}, v4, s[20:23], s25 offen")
        e("s_add_u32 s25, s25, 2560")
    e("v_mul_u32_u24 v5, 20480, v2")
    e("v_add_u32 v5, v5, v3")
    e(f"s_mov_b32 s25, {SP_OFF + 128*2560}")
    for i in range(8):
        e(f"buffer_load_dword v{44+i}, v5, s[20:23], s25 offen")
        e("s_add_u32 s25, s25, 2560")
    e("s_waitcnt vmcnt(0)")
    for i in range(1, 32):
        e(f"v_add_f32 v10, v10, v{10+i}")
    for i in range(1, 8):
        e(f"v_add_f32 v44, v44, v{44+i}")
    e("v_lshlrev_b32 v6, 3, v0")
    e("v_mov_b32 v11, v44")
    e("ds_write_b64 v6, v[10:11]")
    e("s_waitcnt lgkmcnt(0)")
    e("s_barrier")
    e("v_cmp_gt_u32 vcc, 64, v0")
    e("s_and_saveexec_b64 s[30:31], vcc")
    e("s_cbranch_execz L_fn_end")
    for g in range(4):
        e(f"ds_read_b64 v[{12+2*g}:{13+2*g}], v6 offset:{512*g}")
    e("v_lshlrev_b32 v7, 1, v1")
    e("s_lshl_b32 s24, s2, 7")
    e("v_add_u32 v7, s24, v7")
    e("buffer_load_ushort v8, v7, s[12:15], 0 offen")
    e("s_waitcnt vmcnt(0) lgkmcnt(0)")
    e("v_add_f32 v12, v12, v14")
    e("v_add_f32 v16, v16, v18")
    e("v_add_f32 v12, v12, v16")
    e("v_add_f32 v13, v13, v15")
    e("v_add_f32 v17, v17, v19")
    e("v_add_f32 v13, v13, v17")
    bf16r(12, 9)
    bf16r(13, 9)
    e(f"v_mul_f32 v14, {LOG2E}, v13")
    e("v_sub_f32 v14, 0, v14")
    e("v_exp_f32 v14, v14")
    e("s_nop 0")
    e("v_add_f32 v14, 1.0, v14")
    e("v_rcp_f32 v14, v14")
    e("s_nop 0")
    e("v_mul_f32 v14, v13, v14")
    bf16r(14, 9)
    e("v_mul_f32 v14, v12, v14")
    bf16r(14, 9)
    e("v_lshlrev_b32 v8, 16, v8")
    e("v_add_f32 v14, v8, v14")
    e("v_cvt_pk_bf16_f32 v14, v14, v14")
    e("buffer_store_short v14, v7, s[16:19], 0 offen")
    lab("L_fn_end")
    e("s_endpgm")
    return name, 56, 2048, 10


def main():
    kernels = [gen_proj1(), gen_attn(), gen_comb(), gen_final()]
    body = out[:]
    hdr = [f"; generated by gen/gen.py  U={U} NCHUNK={NCHUNK} NT={NT.strip()}"]
    for name, _, lds, grid in kernels:
        hdr.append(f"; @launch kernel={name} grid=({grid},1,1) block=(256,1,1) lds={lds}")
    hdr.append('.amdgcn_target "amdgcn-amd-amdhsa--gfx950"')
    hdr.append(".text")
    out.clear()
    out.append('.section .rodata,"a"')
    for name, vg, _, _ in kernels:
        out.append(".p2align 6")
        descriptor(name, vg)
    text = "\n".join(hdr + body + out) + "\n"
    path = f"cdna_kernels/{NAME}.s"
    with open(path, "w") as f:
        f.write(text)
    print("wrote", path, len(text), "bytes; kernels:", [(k[0], k[1]) for k in kernels])


if __name__ == "__main__":
    main()
```
